```python
import torch

def _softmax(x, axis=-1):
    return torch.softmax(x, dim=axis)
def _gelu(x):
    return torch.nn.functional.gelu(x, approximate="tanh")
def _silu(x):
    return torch.nn.functional.silu(x)
def _sigmoid(x):
    return torch.sigmoid(x)
def _layernorm(x, axis=-1, eps=1e-5):
    m = x.mean(dim=axis, keepdim=True)
    v = x.var(dim=axis, keepdim=True, unbiased=False)
    return (x - m) / torch.sqrt(v + eps)
def _scatter_add(tgt, idx, src, axis=0):
    return tgt.clone().index_add_(axis, idx, src)
def _segment_sum(src, seg, n):
    out = torch.zeros((n,) + src.shape[1:], dtype=src.dtype)
    return out.index_add_(0, seg, src)
def _pad(x, pw):
    flat = tuple(v for pair in reversed(pw) for v in pair)
    return torch.nn.functional.pad(x, flat)

kernel_name = 'concat_heads__grouped_kv_mqa__linear_attn_block__prompt'

def setup_inputs():

    _w = (lambda a: (lambda t: t.to(torch.bfloat16) if t.is_floating_point() else t)(torch.as_tensor(a)))
    def _A_setup():
        B, S, D, H = 1, 2048, 640, 32
        Dh = D // H
        return {
            "x": _w((lambda *s: torch.randn(*s, dtype=torch.bfloat16) * 0.05)(B, S, D)),
            "wq": _w((lambda *s: torch.randn(*s, dtype=torch.bfloat16) * 0.8)(D, H * Dh)),
            "wk": _w((lambda *s: torch.randn(*s, dtype=torch.bfloat16) * 0.8)(D, Dh)),
            "wv": _w((lambda *s: torch.randn(*s, dtype=torch.bfloat16) * 0.05)(D, Dh)),
            "wo": _w((lambda *s: torch.randn(*s, dtype=torch.bfloat16) * 0.05)(H * Dh, D)),
        }
    _A_in = _A_setup()

    def _B_setup():
        B, S, D = 1, 2048, 640
        return {
            "x": _w((lambda *s: torch.randn(*s, dtype=torch.bfloat16) * 0.05)(B, S, D)),
            "wqkv": _w((lambda *s: torch.randn(*s, dtype=torch.bfloat16) * 0.4)(D, 3 * D)),
            "wo": _w((lambda *s: torch.randn(*s, dtype=torch.bfloat16) * 0.05)(D, D)),
        }
    _B_in = _B_setup()

    return {
        "A_x": _A_in["x"],
        "A_wq": _A_in["wq"],
        "A_wk": _A_in["wk"],
        "A_wv": _A_in["wv"],
        "A_wo": _A_in["wo"],
        "B_x": _B_in["x"],
        "B_wqkv": _B_in["wqkv"],
        "B_wo": _B_in["wo"],
    }

def reference(A_x, A_wq, A_wk, A_wv, A_wo, B_x, B_wqkv, B_wo):
    def _A_ref(x, wq, wk, wv, wo):
        B, S, D = x.shape
        H = 32
        Dh = D // H
        q = (lambda x, *d: x.permute(*d))((x @ wq).reshape(B, S, H, Dh), 0, 2, 1, 3)
        k = x @ wk
        v = x @ wv
        scores = torch.einsum("bhqd,bkd->bhqk", q, k) * (Dh ** -0.5)
        p = _softmax(scores, axis=-1)
        o = torch.einsum("bhqk,bkd->bhqd", p, v)
        return (lambda x, *d: x.permute(*d))(o, 0, 2, 1, 3).reshape(B, S, H * Dh) @ wo

    def _B_ref(x, wqkv, wo):
        B, S, D = x.shape
        H = 32; Dh = D // H
        qkv = (lambda x, *d: x.permute(*d))((x @ wqkv).reshape(B, S, 3, H, Dh), 2, 0, 3, 1, 4)
        q, k, v = qkv[0], qkv[1], qkv[2]
        phi = lambda t: torch.where(t > 0, t + 1, torch.exp(t)) + 1e-6
        pq, pk = phi(q), phi(k)
        kv = torch.einsum("bhsd,bhse->bhde", pk, v)
        z = torch.einsum("bhsd->bhd", pk)
        num = torch.einsum("bhqd,bhde->bhqe", pq, kv)
        den = torch.einsum("bhqd,bhd->bhq", pq, z)[..., None] + 1e-6
        o = num / den
        return (lambda x, *d: x.permute(*d))(o, 0, 2, 1, 3).reshape(B, S, D) @ wo

    a = _A_ref(A_x, A_wq, A_wk, A_wv, A_wo)
    b = _B_ref(B_x, B_wqkv, B_wo)
    return torch.concatenate([a, b], axis=-1)
```

```python
import sys, os, subprocess, struct, ctypes
sys.path.insert(0, "cdna_kernels")
import numpy as np
from cdna_launch import AsmKernel, DeviceBuffer, with_harness_metadata, pack_ptr_kernargs, _hip, hip_check

HDR = """; @launch grid=({grid},1,1) block=({block},1,1) lds={lds}
.amdgcn_target "amdgcn-amd-amdhsa--gfx950"
.text
.globl mb_kernel
.p2align 8
.type mb_kernel,@function
mb_kernel:
    s_load_dwordx2 s[4:5], s[0:1], 0
    v_lshrrev_b32 v120, 6, v0
    s_lshl_b32 s3, s2, 4
    v_add_u32 v120, s3, v120
    v_lshlrev_b32 v120, 3, v120
    v_and_b32 v121, 63, v0
    v_lshlrev_b32 v122, 4, v0
{init}
    s_waitcnt lgkmcnt(0)
    s_mov_b32 s8, s4
    s_mov_b32 s9, s5
    s_mov_b32 s10, 0x100000
    s_mov_b32 s11, 0x00020000
    s_mov_b32 s20, {iters}
    s_barrier
    s_memtime s[12:13]
    s_waitcnt lgkmcnt(0)
    .p2align 6
L_loop:
{body}
    s_sub_u32 s20, s20, 1
    s_cmp_lg_u32 s20, 0
    s_cbranch_scc1 L_loop
    s_waitcnt vmcnt(0) lgkmcnt(0)
    s_nop 15
    s_memtime s[14:15]
    s_waitcnt lgkmcnt(0)
    s_sub_u32 s16, s14, s12
    s_subb_u32 s17, s15, s13
    v_mov_b32 v124, s16
    v_mov_b32 v125, s17
    v_cmp_eq_u32 vcc, 0, v121
    s_and_saveexec_b64 s[18:19], vcc
    buffer_store_dwordx2 v[124:125], v120, s[8:11], 0 offen
    s_waitcnt vmcnt(0)
    s_endpgm
.section .rodata,"a"
.p2align 6
.amdhsa_kernel mb_kernel
  .amdhsa_next_free_vgpr {nvgpr}
  .amdhsa_next_free_sgpr 40
  .amdhsa_accum_offset {accum}
  .amdhsa_group_segment_fixed_size 0
  .amdhsa_kernarg_size 8
  .amdhsa_user_sgpr_count 2
  .amdhsa_user_sgpr_kernarg_segment_ptr 1
  .amdhsa_system_sgpr_workgroup_id_x 1
.end_amdhsa_kernel
"""

def build(name, body, init="", grid=256, block=256, lds=0, iters=200, nvgpr=128, accum=128):
    asm = HDR.format(grid=grid, block=block, lds=lds, init=init, body=body, iters=iters, nvgpr=nvgpr, accum=accum)
    full = with_harness_metadata(asm, "mb_kernel", 1)
    nm = "".join(ch if ch.isalnum() else "_" for ch in name); s = f"mb_{nm}.s"; co = f"mb_{nm}.co"
    open(s, "w").write(full)
    r = subprocess.run(["clang", "-x", "assembler", "-target", "amdgcn-amd-amdhsa", "-mcpu=gfx950", s, "-o", co], capture_output=True, text=True)
    if r.returncode != 0:
        print(r.stderr); raise SystemExit(1)
    return co

def run(name, body, init="", grid=256, block=256, lds=0, iters=200, nvgpr=128, accum=128, per=1):
    co = build(name, body, init, grid, block, lds, iters, nvgpr, accum)
    if not os.path.exists('/dev/kfd'):
        print(name, "assembled"); return
    k = AsmKernel(co, "mb_kernel")
    out = DeviceBuffer(1 << 20)
    hip_check(_hip.hipMemset(out._ptr, 0, 1 << 20))
    ka = pack_ptr_kernargs([out.ptr])
    for _ in range(3):
        k.launch((grid, 1, 1), (block, 1, 1), ka, lds)
    hip_check(_hip.hipDeviceSynchronize())
    o = out.to_numpy(np.uint64, (1 << 17,))
    nw = block // 64
    vals = np.array([o[g * 16 + w] for g in range(grid) for w in range(nw)], dtype=np.float64)
    c = vals / iters
    wps = max(1, nw // 4)
    cw = c.reshape(grid, nw).max(axis=1)
    print(f"{name:40s} waves/SIMD={wps} cyc/iter med={np.median(c):8.1f} min={c.min():8.1f} wgmax_med={np.median(cw):8.1f}  per-unit-per-SIMD={np.median(cw)/per/wps:7.2f}")
    k.unload(); out.free()

def init_regs(n=120):
    s = []
    for i in range(1, n):
        s.append(f"    v_mov_b32 v{i}, 0")
    return "\n".join(s)
```

```python
from micro import *
INIT = init_regs() + "\n" + "\n".join(f"    v_accvgpr_write_b32 a{i}, 0" for i in range(64))
def softmax(S, P):
    l = []
    for i in range(0, 16, 2):
        l.append(f"v_exp_f32 v{S+i}, v{S+i}")
        l.append(f"v_exp_f32 v{S+i+1}, v{S+i+1}")
        if i >= 2:
            l.append(f"v_cvt_pk_bf16_f32 v{P+i//2-1}, v{S+i-2}, v{S+i-1}")
    l.append("s_nop 0")
    l.append(f"v_cvt_pk_bf16_f32 v{P+7}, v{S+14}, v{S+15}")
    return l
def interleave(valu, mfmas, positions):
    out = []
    m = list(mfmas)
    for i, v in enumerate(valu):
        if i in positions and m:
            out.append(m.pop(0))
        out.append(v)
    out += m
    return out
def fmt(l): return "\n".join("    " + x for x in l)

def body(qk, pv, positions, unroll=8):
    out = []
    for t in range(unroll):
        S = 32 + 16 * (t % 2); Sn = 32 + 16 * ((t + 1) % 2)
        P = 64 + 8 * (t % 2); Pp = 64 + 8 * ((t + 1) % 2)
        mf = qk(Sn, t) + pv(Pp)
        out += interleave(softmax(S, P), mf, positions)
    return fmt(out)

def qk_base(S, t):
    return [f"v_mfma_f32_32x32x16_bf16 v[{S}:{S+15}], v[4:7], v[12:15], 0",
            f"v_mfma_f32_32x32x16_bf16 v[{S}:{S+15}], v[8:11], v[16:19], v[{S}:{S+15}]"]
def qk_x8(S, t):
    return [f"v_mfma_f32_32x32x16_bf16 v[{S}:{S+15}], v[4:7], v[12:15], 0",
            f"v_mfma_f32_32x32x8_bf16 v[{S}:{S+15}], v[8:9], v[16:17], v[{S}:{S+15}]"]
def qk_one(S, t):
    return [f"v_mfma_f32_32x32x16_bf16 v[{S}:{S+15}], v[4:7], v[12:15], 0"]
def qk_none(S, t):
    return []
def qk_acc(S, t):
    return [f"v_mfma_f32_32x32x16_bf16 v[{S}:{S+15}], a[4:7], a[12:15], 0",
            f"v_mfma_f32_32x32x16_bf16 v[{S}:{S+15}], a[8:11], a[16:19], v[{S}:{S+15}]"]
def pv_base(P, O=80):
    return [f"v_mfma_f32_32x32x16_bf16 v[{O}:{O+15}], v[20:23], v[{P}:{P+3}], v[{O}:{O+15}]",
            f"v_mfma_f32_32x32x16_bf16 v[{O}:{O+15}], v[24:27], v[{P+4}:{P+7}], v[{O}:{O+15}]"]
def pv_acc(P, O=32):
    return [f"v_mfma_f32_32x32x16_bf16 a[{O}:{O+15}], a[20:23], v[{P}:{P+3}], a[{O}:{O+15}]",
            f"v_mfma_f32_32x32x16_bf16 a[{O}:{O+15}], a[24:27], v[{P+4}:{P+7}], a[{O}:{O+15}]"]
def pv_16(P, O=80):
    return [f"v_mfma_f32_16x16x32_bf16 v[{O}:{O+3}], v[20:23], v[{P}:{P+3}], v[{O}:{O+3}]",
            f"v_mfma_f32_16x16x32_bf16 v[{O+4}:{O+7}], v[24:27], v[{P+4}:{P+7}], v[{O+4}:{O+7}]"]
def pv_none(P): return []

kw = dict(per=8, iters=50, nvgpr=192, accum=128)
for blk in (256, 512):
    run("base", body(qk_base, pv_base, [0, 6, 12, 18]), INIT, block=blk, **kw)
    run("qk_x8", body(qk_x8, pv_base, [0, 6, 12, 18]), INIT, block=blk, **kw)
    run("qk_one(3 mfma)", body(qk_one, pv_base, [0, 8, 16]), INIT, block=blk, **kw)
    run("pv only(2 mfma)", body(qk_none, pv_base, [0, 12]), INIT, block=blk, **kw)
    run("qk only(2 mfma)", body(qk_base, pv_none, [0, 12]), INIT, block=blk, **kw)
    run("acc A/B + acc O", body(qk_acc, pv_acc, [0, 6, 12, 18]), INIT, block=blk, **kw)
    run("base qk + acc pv", body(qk_base, pv_acc, [0, 6, 12, 18]), INIT, block=blk, **kw)
    run("pv16 only", body(qk_none, pv_16, [0, 12]), INIT, block=blk, **kw)
    def qk_2b(S, t):
        if t % 2 == 0:
            return [f"v_mfma_f32_32x32x4_2b_bf16 v[80:111], v[4:5], v[12:13], v[80:111]"]
        return []
    run("2b every other tile", body(qk_2b, pv_none, [0]), INIT, block=blk, **kw)
    m = "\n".join(f"    v_mfma_f32_32x32x4_2b_bf16 v[{16+32*i}:{47+32*i}], v[4:5], v[8:9], v[{16+32*i}:{47+32*i}]" for i in range(3))
    run("mfma32x4_2b alone", m + "\n" + m, INIT, block=blk, per=6, iters=50, nvgpr=192, accum=128)
```

```python
from micro import *
import micro
INIT = init_regs(119) + "\n" + "\n".join(f"    v_mov_b32 v{i}, 0" for i in range(128, 190))
AQ=[16,24]; AS=[64,80]; AP=96; AO=[128,144]; KF=[32,40]; VFB=[160,168]
r4=lambda b:f"v[{b}:{b+3}]"; r2=lambda b:f"v[{b}:{b+1}]"; r16=lambda b:f"v[{b}:{b+15}]"
def qk16(n): return f"v_mfma_f32_32x32x16_bf16 {r16(AS[n%2])}, {r4(KF[(n//2)%2])}, {r4(AQ[n%2])}, 0"
def qk8(n):
    S=AS[n%2]; return f"v_mfma_f32_32x32x8_bf16 {r16(S)}, {r2(KF[(n//2)%2]+4)}, {r2(AQ[n%2]+4)}, {r16(S)}"
def pv(n,s):
    O=AO[n%2]; return f"v_mfma_f32_32x32x16_bf16 {r16(O)}, {r4(VFB[(n//2)%2]+4*s)}, {r4(AP+4*s)}, {r16(O)}"
def kr(T): return [f"ds_read_b128 {r4(KF[T%2])}, v122 offset:{(T%4)*2640}", f"ds_read_b64 {r2(KF[T%2]+4)}, v122 offset:{(T%4)*2640+1024}"]
def vr(T): return [f"ds_read_b128 {r4(VFB[T%2])}, v122 offset:{(T%4)*2640+1296}", f"ds_read_b128 {r4(VFB[T%2]+4)}, v122 offset:{(T%4)*2640+1968}"]
def body(ds=True, bar=True, wait="each", order=0, prio=None, nsteps=8):
    o=[]
    for n in range(nsteps):
        S=AS[n%2]; T=n//2
        e=lambda k:f"v_exp_f32 v{S+k}, v{S+k}"
        c=lambda k:f"v_cvt_pk_bf16_f32 v{AP+k}, v{S+2*k}, v{S+2*k+1}"
        if ds and (wait=="each" or (wait=="odd" and n%2==1)): o.append("s_waitcnt lgkmcnt(0)")
        if bar and n%8==6: o.append("s_barrier")
        if prio and n%8 in prio: o.append(prio[n%8])
        if wait=="odd":
            rd = (kr(T+1)+vr(T+1)) if n%2==1 and False else []
        rd = (kr(T+1) if n%2==0 else vr(T+1)) if ds else []
        if order==0:
            o += [qk16(n+1), e(0),e(1),e(2),e(3),c(0), qk8(n+1)] + rd + [e(4),e(5),c(1),e(6),e(7), pv(n-1,1), c(2),e(8),e(9),c(3),e(10),e(11), pv(n,0), c(4),e(12),e(13),c(5),e(14),e(15),c(6),c(7)]
        elif order==1:
            r0 = rd[:1]; r1 = rd[1:]
            o += [qk16(n+1)] + r0 + [e(0),e(1),e(2),e(3),c(0), qk8(n+1)] + r1 + [e(4),e(5),c(1),e(6),e(7), pv(n-1,1), c(2),e(8),e(9),c(3),e(10),e(11), pv(n,0), c(4),e(12),e(13),c(5),e(14),e(15),c(6),c(7)]
        elif order==2:
            o += [qk16(n+1), e(0),e(1),e(2),e(3),c(0),c(0).replace(f"v{AP+0},", f"v{AP+0},") and e(4), qk8(n+1)] + rd + [e(5),c(1),e(6),e(7),c(2),e(8), pv(n-1,1), e(9),c(3),e(10),e(11),e(12), pv(n,0), c(4),e(13),c(5),e(14),e(15),c(6),c(7)]
    return "\n".join("    "+x for x in o)
kw=dict(per=8, iters=40, nvgpr=192, accum=192, lds=65536)
for blk in (512,):
    run("ds + bar order1", body(True, True, order=1), INIT, block=blk, **kw)
    run("prio 3210", body(True, True, order=1, prio={6:"s_setprio 3",0:"s_setprio 2",2:"s_setprio 1",4:"s_setprio 0"}), INIT, block=blk, **kw)
    run("prio 3210 late", body(True, True, order=1, prio={6:"s_setprio 3",2:"s_setprio 2",4:"s_setprio 1",5:"s_setprio 0"}), INIT, block=blk, **kw)
    run("prio 10", body(True, True, order=1, prio={6:"s_setprio 1",2:"s_setprio 0"}), INIT, block=blk, **kw)
    run("prio 3210 later", body(True, True, order=1, prio={6:"s_setprio 3",3:"s_setprio 2",4:"s_setprio 1",5:"s_setprio 0"}), INIT, block=blk, **kw)
    run("prio 3210 wait odd", body(True, True, order=1, wait="odd", prio={6:"s_setprio 3",0:"s_setprio 2",2:"s_setprio 1",4:"s_setprio 0"}), INIT, block=blk, **kw)
    kw2 = dict(kw); kw2["per"] = 16; kw2["iters"] = 20
    run("16 steps unrolled ds+bar", body(True, True, order=1, nsteps=16), INIT, block=blk, **kw2)
    run("16 steps unrolled prio", body(True, True, order=1, nsteps=16, prio={6:"s_setprio 3",0:"s_setprio 2",2:"s_setprio 1",4:"s_setprio 0"}), INIT, block=blk, **kw2)
```

```python
from micro import *
INIT = init_regs(119) + "\n" + "\n".join(f"    v_mov_b32 v{i}, 0" for i in range(128, 250)) + "\n    v_lshrrev_b32 v119, 6, v0\n    s_nop 1\n    v_readfirstlane_b32 s30, v119\n"
AQ=[16,24]; AS=[64,80]; AP=96; AO=[128,144]; KF=[32,40]; VFB=[160,168]
r4=lambda b:f"v[{b}:{b+3}]"; r2=lambda b:f"v[{b}:{b+1}]"; r16=lambda b:f"v[{b}:{b+15}]"
def qk16(n): return f"v_mfma_f32_32x32x16_bf16 {r16(AS[n%2])}, {r4(KF[(n//2)%2])}, {r4(AQ[n%2])}, 0"
def qk8(n):
    S=AS[n%2]; return f"v_mfma_f32_32x32x8_bf16 {r16(S)}, {r2(KF[(n//2)%2]+4)}, {r2(AQ[n%2]+4)}, {r16(S)}"
def pv(n,s):
    O=AO[n%2]; return f"v_mfma_f32_32x32x16_bf16 {r16(O)}, {r4(VFB[(n//2)%2]+4*s)}, {r4(AP+4*s)}, {r16(O)}"
def kr(T): return [f"ds_read_b128 {r4(KF[T%2])}, v122 offset:{(T%4)*2640}", f"ds_read_b64 {r2(KF[T%2]+4)}, v122 offset:{(T%4)*2640+1024}"]
def vr(T): return [f"ds_read_b128 {r4(VFB[T%2])}, v122 offset:{(T%4)*2640+1296}", f"ds_read_b128 {r4(VFB[T%2]+4)}, v122 offset:{(T%4)*2640+1968}"]
def bsteps(k, mode):
    o=[]
    for n in range(k):
        S=AS[n%2]; T=n//2
        e=lambda k:f"v_exp_f32 v{S+k}, v{S+k}"
        c=lambda k:f"v_cvt_pk_bf16_f32 v{AP+k}, v{S+2*k}, v{S+2*k+1}"
        rd = kr(T+1) if n%2==0 else vr(T+1)
        hi, lo = "s_setprio 3", "s_setprio 0"
        if mode == "plain":
            o += ["s_waitcnt lgkmcnt(0)", qk16(n+1), rd[0], e(0),e(1),e(2),e(3),c(0), qk8(n+1), rd[1], e(4),e(5),c(1),e(6),e(7), pv(n-1,1), c(2),e(8),e(9),c(3),e(10),e(11), pv(n,0), c(4),e(12),e(13),c(5),e(14),e(15),c(6),c(7)]
        elif mode == "cluster":
            o += ["s_waitcnt lgkmcnt(0)", qk16(n+1), e(0),e(1),e(2), qk8(n+1), rd[0], rd[1], e(3),c(0),e(4), pv(n-1,1), e(5),c(1),e(6),e(7),c(2),c(3),e(8), pv(n,0), e(9),e(10),e(11),c(4),e(12),e(13),c(5),e(14),e(15),c(6),c(7)]
        elif mode == "hiM":
            o += ["s_waitcnt lgkmcnt(0)", hi, qk16(n+1), lo, rd[0], e(0),e(1),e(2),e(3),c(0), hi, qk8(n+1), lo, rd[1], e(4),e(5),c(1),e(6),e(7), hi, pv(n-1,1), lo, c(2),e(8),e(9),c(3),e(10),e(11), hi, pv(n,0), lo, c(4),e(12),e(13),c(5),e(14),e(15),c(6),c(7)]
        elif mode == "win":
            o += ["s_waitcnt lgkmcnt(0)", hi, qk16(n+1), e(0),e(1),e(2), qk8(n+1), rd[0], rd[1], e(3),c(0),e(4), pv(n-1,1), e(5),c(1),e(6),e(7),c(2),c(3),e(8), pv(n,0), e(9),e(10),e(11), lo, c(4),e(12),e(13),c(5),e(14),e(15),c(6),c(7)]
    return o
def agemm(big, nrd=36):
    o=[]
    if not big:
        for i in range(32):
            A=64+4*(i%16)
            o.append(f"v_mfma_f32_16x16x32_bf16 {r4(A)}, {r4(16+4*(i%4))}, {r4(32+4*(i%8))}, {r4(A)}")
            o.append(f"ds_read_b64_tr_b16 {r2(180+2*(i%16))}, v122 offset:{i*512}")
            if i%4==3: o.append("s_waitcnt lgkmcnt(8)")
    else:
        for i in range(16):
            A=128+16*(i%4)
            o.append(f"v_mfma_f32_32x32x16_bf16 {r16(A)}, {r4(16+4*(i%4))}, {r4(32+4*(i%8))}, {r16(A)}")
            o.append(f"ds_read_b64_tr_b16 {r2(200+2*(i%16))}, v122 offset:{i*512}")
            o.append(f"ds_read_b64_tr_b16 {r2(200+2*(i%16))}, v122 offset:{i*512+256}")
            if i%2==1: o.append("s_waitcnt lgkmcnt(8)")
    return o
def body(k, mode, pa, pb, big=False):
    o = ["s_cmp_ge_u32 s30, 4", "s_cbranch_scc1 LB", f"s_setprio {pa}"] + agemm(big) + ["s_branch LJ", "LB:", f"s_setprio {pb}"] + bsteps(k, mode) + ["LJ:", "s_barrier"]
    return "\n".join("    "+x for x in o)
kw=dict(per=0.5, iters=40, nvgpr=256, accum=256, lds=65536, block=512)
for k in (4, 6):
    for big in (False, True):
        for mode, pa, pb in (("plain",3,0),("plain",0,3),("cluster",3,0),("cluster",0,3),("hiM",1,0),("win",1,3)):
            run(f"k={k} big={int(big)} {mode} pa={pa} pb={pb} ideal={k*192}", body(k, mode, pa, pb, big), INIT, **kw)
```

```python
import micro, os, sys
from micro import *
from cdna_launch import _hip
import numpy as np
H = micro.HDR
H = H.replace("    s_memtime s[12:13]\n", "    s_memtime s[12:13]\n    s_memrealtime s[22:23]\n")
H = H.replace("    s_memtime s[14:15]\n", "    s_memtime s[14:15]\n    s_memrealtime s[24:25]\n")
H = H.replace("    s_subb_u32 s17, s15, s13\n", "    s_sub_u32 s17, s24, s22\n")
micro.HDR = H
AQ=[16,24]; AS=[64,80]; AP=96; AO=[128,144]; KF=[32,40]; VFB=[160,168]
r4=lambda b:f"v[{b}:{b+3}]"; r2=lambda b:f"v[{b}:{b+1}]"; r16=lambda b:f"v[{b}:{b+15}]"
def qk16(n): return f"v_mfma_f32_32x32x16_bf16 {r16(AS[n%2])}, {r4(KF[(n//2)%2])}, {r4(AQ[n%2])}, 0"
def qk8(n):
    S=AS[n%2]; return f"v_mfma_f32_32x32x8_bf16 {r16(S)}, {r2(KF[(n//2)%2]+4)}, {r2(AQ[n%2]+4)}, {r16(S)}"
def pv(n,s):
    O=AO[n%2]; return f"v_mfma_f32_32x32x16_bf16 {r16(O)}, {r4(VFB[(n//2)%2]+4*s)}, {r4(AP+4*s)}, {r16(O)}"
def rnd(reg, seed, mask="0xbfffbfff", orv="0x3c003c00"):
    return f"""    v_xor_b32 v{reg}, {hex(seed)}, v0
    v_mul_lo_u32 v{reg}, v{reg}, s28
    v_lshrrev_b32 v118, 13, v{reg}
    v_xor_b32 v{reg}, v{reg}, v118
    v_mul_lo_u32 v{reg}, v{reg}, s28
    v_and_b32 v{reg}, 0x83ff83ff, v{reg}
    v_or_b32 v{reg}, {orv}, v{reg}"""
def init(vmode):
    l = [init_regs(119)] + [f"    v_mov_b32 v{i}, 0" for i in range(128, 190)] + ["    s_mov_b32 s28, 0x9e3779b1"]
    for r in list(range(16, 22)) + list(range(24, 30)) + list(range(32, 38)) + list(range(40, 46)) + list(range(160, 176)):
        l.append(rnd(r, 0x1234 + 977 * r))
    l.append("    s_mov_b32 exec_lo, 0")
    for r in (36, 44): l.append(f"    v_mov_b32 v{r}, 0x3f80\n    v_mov_b32 v{r+1}, 0")
    for r in (20, 28): l.append(f"    v_mov_b32 v{r}, 0xc120\n    v_mov_b32 v{r+1}, 0")
    m = 0xfff00000 if vmode != "rand" else 0
    if m:
        l.append(f"    s_mov_b32 exec_lo, {hex(m)}\n    s_mov_b32 exec_hi, {hex(m)}")
        for r in range(160, 176): l.append(f"    v_mov_b32 v{r}, 0x3f803f80")
        if vmode == "zero":
            l.append(f"    s_mov_b32 exec_lo, 0xffe00000\n    s_mov_b32 exec_hi, 0xffe00000")
            for r in range(160, 176): l.append(f"    v_mov_b32 v{r}, 0")
    l.append("    s_mov_b64 exec, -1")
    return "\n".join(l)
def body(mf=True, va=True):
    o=[]
    for n in range(8):
        S=AS[n%2]
        e=lambda k:f"v_exp_f32 v{S+k}, v{S+k}"
        c=lambda k:f"v_cvt_pk_bf16_f32 v{AP+k}, v{S+2*k}, v{S+2*k+1}"
        seq = [qk16(n+1), e(0),e(1),e(2),e(3),c(0), qk8(n+1), e(4),e(5),c(1),e(6),e(7), pv(n-1,1), c(2),e(8),e(9),c(3),e(10),e(11), pv(n,0), c(4),e(12),e(13),c(5),e(14),e(15),c(6),c(7)]
        o += [x for x in seq if (mf or "mfma" not in x) and (va or "mfma" in x)]
    return "\n".join("    "+x for x in o)
def run2(name, b, ini, iters):
    co = build(name, b, ini, 256, 512, 0, iters, 192, 192)
    if not os.path.exists('/dev/kfd'): print(name); return
    k = AsmKernel(co, "mb_kernel"); out = DeviceBuffer(1 << 20); ka = pack_ptr_kernargs([out.ptr])
    res = []
    for it in range(8):
        hip_check(_hip.hipMemset(big._ptr, it, 256 << 20))
        k.launch((256,1,1),(512,1,1),ka,0)
        hip_check(_hip.hipDeviceSynchronize())
        o = out.to_numpy(np.uint32, (1 << 18,)).reshape(-1, 2)
        v = np.array([o[g*16+w] for g in range(256) for w in range(4, 8)], dtype=np.float64)
        res.append((np.median(v[:,0]), np.median(v[:,1])))
    r = np.median(np.array(res), axis=0)
    print(f"{name:28s} cycles={r[0]:.0f} time_us={r[1]/100:.2f} clock={r[0]/r[1]/10:.3f} GHz")
if os.path.exists('/dev/kfd'): big = DeviceBuffer(256 << 20)


def kr(T): return [f"ds_read_b128 {r4(200)}, v122 offset:{(T%4)*2640}", f"ds_read_b64 {r2(204)}, v122 offset:{(T%4)*2640+1024}"]
def vr(T): return [f"ds_read_b128 {r4(208)}, v122 offset:{(T%4)*2640+1296}", f"ds_read_b128 {r4(212)}, v122 offset:{(T%4)*2640+1968}"]
def body3(nst, mode, pad=0):
    o=["s_nop 0"]*pad
    for n in range(nst):
        S=AS[n%2]; T=n//2
        e=lambda k:f"v_exp_f32 v{S+k}, v{S+k}"
        c=lambda k:f"v_cvt_pk_bf16_f32 v{AP+k}, v{S+2*k}, v{S+2*k+1}"
        rd = kr(T+1) if n%2==0 else vr(T+1)
        if mode == "base":
            o += ["s_waitcnt lgkmcnt(0)", qk16(n+1), rd[0], e(0),e(1),e(2),e(3),c(0), qk8(n+1), rd[1], e(4),e(5),c(1),e(6),e(7), pv(n-1,1), c(2),e(8),e(9),c(3),e(10),e(11), pv(n,0), c(4),e(12),e(13),c(5),e(14),e(15),c(6),c(7)]
        elif mode == "nowait2":
            if n % 2 == 0:
                r = kr(T+1) + vr(T+1)
                o += [qk16(n+1), r[0], e(0),e(1),e(2),e(3),c(0), qk8(n+1), r[1], e(4),e(5),c(1),e(6),e(7), pv(n-1,1), r[2], c(2),e(8),e(9),c(3),e(10),e(11), pv(n,0), r[3], c(4),e(12),e(13),c(5),e(14),e(15),c(6),c(7)]
            else:
                o += ["s_waitcnt lgkmcnt(0)", qk16(n+1), e(0),e(1),e(2),e(3),c(0), qk8(n+1), e(4),e(5),c(1),e(6),e(7), pv(n-1,1), c(2),e(8),e(9),c(3),e(10),e(11), pv(n,0), c(4),e(12),e(13),c(5),e(14),e(15),c(6),c(7)]
        elif mode == "aligned":
            o += [ e(0), "s_waitcnt lgkmcnt(0)", qk16(n+1), rd[0], e(1),e(2),c(0), e(3).replace("v_exp_f32","v_exp_f32_e64"), qk8(n+1), rd[1], e(4),e(5),c(1),e(6),e(7), pv(n-1,1), c(2),e(8),e(9),c(3),e(10),e(11), pv(n,0), c(4),e(12),e(13),c(5),e(14),e(15),c(6),c(7)]
        elif mode == "nods":
            o += [qk16(n+1), e(0),e(1),e(2),e(3),c(0), qk8(n+1), e(4),e(5),c(1),e(6),e(7), pv(n-1,1), c(2),e(8),e(9),c(3),e(10),e(11), pv(n,0), c(4),e(12),e(13),c(5),e(14),e(15),c(6),c(7)]
    return "\n".join("    "+x for x in o)
def run3(name, b, ini, iters, blk, nst):
    co = build(name, b, ini, 256, blk, 65536, iters, 256, 256)
    if not os.path.exists('/dev/kfd'): print(name); return
    k = AsmKernel(co, "mb_kernel"); out = DeviceBuffer(1 << 20); ka = pack_ptr_kernargs([out.ptr])
    res = []
    for it in range(6):
        hip_check(_hip.hipMemset(big._ptr, it, 256 << 20))
        k.launch((256,1,1),(blk,1,1),ka,65536)
        hip_check(_hip.hipDeviceSynchronize())
        o = out.to_numpy(np.uint32, (1 << 18,)).reshape(-1, 2)
        v = np.array([o[g*16+w] for g in range(256) for w in range(blk//64-4, blk//64)], dtype=np.float64)
        res.append((np.median(v[:,0]), np.median(v[:,1])))
    r = np.median(np.array(res), axis=0)
    print(f"{name:28s} cycles={r[0]:.0f} per-step={r[0]/iters/nst/(blk//256):.1f} time_us={r[1]/100:.2f} clock={r[0]/r[1]/10:.3f} GHz")

INI = init("zero") + "\n    v_lshrrev_b32 v119, 6, v0\n    s_nop 1\n    v_readfirstlane_b32 s30, v119\n    v_mov_b32 v230, 0\n    ds_write_b32 v230, v230\n"
def partner(kind, pa):
    pre = [f"s_setprio {pa}"]
    chk = ["ds_read_b32 v231, v230", "s_waitcnt lgkmcnt(0)", "v_cmp_gt_u32 vcc, s31, v231", "s_cbranch_vccnz LA"]
    if kind == "idle": return pre
    if kind == "spin": return pre + ["LA:"] + chk
    if kind == "sleep8": return pre + ["LA:", "s_sleep 8"] + chk
    if kind == "salu": return pre + ["LA:"] + ["s_add_u32 s33, s33, 1"] * 64 + chk
    if kind == "dma": return pre + ["s_mov_b32 m0, 32768", "LA:"] + ["buffer_load_dwordx4 v122, s[8:11], 0 offen lds"] * 8 + ["s_waitcnt vmcnt(8)"] + chk
    if kind.startswith("dmaw"):
        n = int(kind[4:])
        l = []
        for i in range(16):
            l += [f"buffer_load_dwordx4 v229, s[8:11], s34 offen lds", "s_add_u32 s34, s34, 128", "s_and_b32 s34, s34, 0x3ff", f"s_waitcnt vmcnt({n})"]
        return pre + ["s_mov_b32 m0, 32768", "s_mov_b32 s34, 0", "LA:"] + l + ["s_add_u32 s35, s35, 1"] + chk
    if kind == "dsrd": return pre + ["LA:"] + [f"ds_read_b64_tr_b16 v[{232+2*(i%4)}:{233+2*(i%4)}], v122 offset:{i*512}" for i in range(12)] + chk
def body4(kind, pa, pb):
    A = partner(kind, pa)
    o = ["s_add_u32 s31, s31, 4", "s_cmp_ge_u32 s30, 4", "s_cbranch_scc1 LB"] + A + ["s_branch LJ", "LB:", f"s_setprio {pb}"]
    b = "\n".join(("    " + x) for x in o) + "\n" + body3(128, "nowait2") + "\n"
    b += "    s_mov_b64 exec, 1\n    v_mov_b32 v231, 1\n    ds_add_u32 v230, v231\n    s_mov_b64 exec, -1\nLJ:"
    return b
INI2 = INI + "    s_mov_b32 s31, 0\n    s_mov_b32 s35, 0\n    v_lshrrev_b32 v229, 2, v0\n    v_mul_u32_u24 v229, 1280, v229\n    v_and_b32 v228, 3, v0\n    v_lshl_add_u32 v229, v228, 4, v229\n"
for kind in ("idle", "spin", "sleep8", "salu", "dma", "dsrd", "dmaw40", "dmaw4", "dmaw1"):
    for pa in (0, 3):
        run3(f"partner {kind} pa{pa}", body4(kind, pa, 2), INI2, 1, 512, 64)
```

```python
import micro, os, sys
from micro import *
from cdna_launch import _hip
import numpy as np
H = micro.HDR
H = H.replace("    s_memtime s[12:13]\n", "    s_memtime s[12:13]\n    s_memrealtime s[22:23]\n")
H = H.replace("    s_memtime s[14:15]\n", "    s_memtime s[14:15]\n    s_memrealtime s[24:25]\n")
H = H.replace("    s_subb_u32 s17, s15, s13\n", "    s_sub_u32 s17, s24, s22\n")
micro.HDR = H
AQ=[16,24]; AS=[64,80]; AP=96; AO=[128,144]; KF=[32,40]; VFB=[160,168]
r4=lambda b:f"v[{b}:{b+3}]"; r2=lambda b:f"v[{b}:{b+1}]"; r16=lambda b:f"v[{b}:{b+15}]"
def qk16(n): return f"v_mfma_f32_32x32x16_bf16 {r16(AS[n%2])}, {r4(KF[(n//2)%2])}, {r4(AQ[n%2])}, 0"
def qk8(n):
    S=AS[n%2]; return f"v_mfma_f32_32x32x8_bf16 {r16(S)}, {r2(KF[(n//2)%2]+4)}, {r2(AQ[n%2]+4)}, {r16(S)}"
def pv(n,s):
    O=AO[n%2]; return f"v_mfma_f32_32x32x16_bf16 {r16(O)}, {r4(VFB[(n//2)%2]+4*s)}, {r4(AP+4*s)}, {r16(O)}"
def rnd(reg, seed, mask="0xbfffbfff", orv="0x3c003c00"):
    return f"""    v_xor_b32 v{reg}, {hex(seed)}, v0
    v_mul_lo_u32 v{reg}, v{reg}, s28
    v_lshrrev_b32 v118, 13, v{reg}
    v_xor_b32 v{reg}, v{reg}, v118
    v_mul_lo_u32 v{reg}, v{reg}, s28
    v_and_b32 v{reg}, 0x83ff83ff, v{reg}
    v_or_b32 v{reg}, {orv}, v{reg}"""
def init(vmode):
    l = [init_regs(119)] + [f"    v_mov_b32 v{i}, 0" for i in range(128, 190)] + ["    s_mov_b32 s28, 0x9e3779b1"]
    for r in list(range(16, 22)) + list(range(24, 30)) + list(range(32, 38)) + list(range(40, 46)) + list(range(160, 176)):
        l.append(rnd(r, 0x1234 + 977 * r))
    l.append("    s_mov_b32 exec_lo, 0")
    for r in (36, 44): l.append(f"    v_mov_b32 v{r}, 0x3f80\n    v_mov_b32 v{r+1}, 0")
    for r in (20, 28): l.append(f"    v_mov_b32 v{r}, 0xc120\n    v_mov_b32 v{r+1}, 0")
    m = 0xfff00000 if vmode != "rand" else 0
    if m:
        l.append(f"    s_mov_b32 exec_lo, {hex(m)}\n    s_mov_b32 exec_hi, {hex(m)}")
        for r in range(160, 176): l.append(f"    v_mov_b32 v{r}, 0x3f803f80")
        if vmode == "zero":
            l.append(f"    s_mov_b32 exec_lo, 0xffe00000\n    s_mov_b32 exec_hi, 0xffe00000")
            for r in range(160, 176): l.append(f"    v_mov_b32 v{r}, 0")
    l.append("    s_mov_b64 exec, -1")
    return "\n".join(l)
def body(mf=True, va=True):
    o=[]
    for n in range(8):
        S=AS[n%2]
        e=lambda k:f"v_exp_f32 v{S+k}, v{S+k}"
        c=lambda k:f"v_cvt_pk_bf16_f32 v{AP+k}, v{S+2*k}, v{S+2*k+1}"
        seq = [qk16(n+1), e(0),e(1),e(2),e(3),c(0), qk8(n+1), e(4),e(5),c(1),e(6),e(7), pv(n-1,1), c(2),e(8),e(9),c(3),e(10),e(11), pv(n,0), c(4),e(12),e(13),c(5),e(14),e(15),c(6),c(7)]
        o += [x for x in seq if (mf or "mfma" not in x) and (va or "mfma" in x)]
    return "\n".join("    "+x for x in o)
def run2(name, b, ini, iters):
    co = build(name, b, ini, 256, 512, 0, iters, 192, 192)
    if not os.path.exists('/dev/kfd'): print(name); return
    k = AsmKernel(co, "mb_kernel"); out = DeviceBuffer(1 << 20); ka = pack_ptr_kernargs([out.ptr])
    res = []
    for it in range(8):
        hip_check(_hip.hipMemset(big._ptr, it, 256 << 20))
        k.launch((256,1,1),(512,1,1),ka,0)
        hip_check(_hip.hipDeviceSynchronize())
        o = out.to_numpy(np.uint32, (1 << 18,)).reshape(-1, 2)
        v = np.array([o[g*16+w] for g in range(256) for w in range(4, 8)], dtype=np.float64)
        res.append((np.median(v[:,0]), np.median(v[:,1])))
    r = np.median(np.array(res), axis=0)
    print(f"{name:28s} cycles={r[0]:.0f} time_us={r[1]/100:.2f} clock={r[0]/r[1]/10:.3f} GHz")
if os.path.exists('/dev/kfd'): big = DeviceBuffer(256 << 20)


def kr(T): return [f"ds_read_b128 {r4(200)}, v122 offset:{(T%4)*2640}", f"ds_read_b64 {r2(204)}, v122 offset:{(T%4)*2640+1024}"]
def vr(T): return [f"ds_read_b128 {r4(208)}, v122 offset:{(T%4)*2640+1296}", f"ds_read_b128 {r4(212)}, v122 offset:{(T%4)*2640+1968}"]
def body3(nst, mode, pad=0):
    o=["s_nop 0"]*pad
    for n in range(nst):
        S=AS[n%2]; T=n//2
        e=lambda k:f"v_exp_f32 v{S+k}, v{S+k}"
        c=lambda k:f"v_cvt_pk_bf16_f32 v{AP+k}, v{S+2*k}, v{S+2*k+1}"
        rd = kr(T+1) if n%2==0 else vr(T+1)
        if mode == "base":
            o += ["s_waitcnt lgkmcnt(0)", qk16(n+1), rd[0], e(0),e(1),e(2),e(3),c(0), qk8(n+1), rd[1], e(4),e(5),c(1),e(6),e(7), pv(n-1,1), c(2),e(8),e(9),c(3),e(10),e(11), pv(n,0), c(4),e(12),e(13),c(5),e(14),e(15),c(6),c(7)]
        elif mode == "nowait2":
            if n % 2 == 0:
                r = kr(T+1) + vr(T+1)
                o += [qk16(n+1), r[0], e(0),e(1),e(2),e(3),c(0), qk8(n+1), r[1], e(4),e(5),c(1),e(6),e(7), pv(n-1,1), r[2], c(2),e(8),e(9),c(3),e(10),e(11), pv(n,0), r[3], c(4),e(12),e(13),c(5),e(14),e(15),c(6),c(7)]
            else:
                o += ["s_waitcnt lgkmcnt(0)", qk16(n+1), e(0),e(1),e(2),e(3),c(0), qk8(n+1), e(4),e(5),c(1),e(6),e(7), pv(n-1,1), c(2),e(8),e(9),c(3),e(10),e(11), pv(n,0), c(4),e(12),e(13),c(5),e(14),e(15),c(6),c(7)]
        elif mode == "aligned":
            o += [ e(0), "s_waitcnt lgkmcnt(0)", qk16(n+1), rd[0], e(1),e(2),c(0), e(3).replace("v_exp_f32","v_exp_f32_e64"), qk8(n+1), rd[1], e(4),e(5),c(1),e(6),e(7), pv(n-1,1), c(2),e(8),e(9),c(3),e(10),e(11), pv(n,0), c(4),e(12),e(13),c(5),e(14),e(15),c(6),c(7)]
        elif mode == "nods":
            o += [qk16(n+1), e(0),e(1),e(2),e(3),c(0), qk8(n+1), e(4),e(5),c(1),e(6),e(7), pv(n-1,1), c(2),e(8),e(9),c(3),e(10),e(11), pv(n,0), c(4),e(12),e(13),c(5),e(14),e(15),c(6),c(7)]
    return "\n".join("    "+x for x in o)
def run3(name, b, ini, iters, blk, nst):
    co = build(name, b, ini, 256, blk, 65536, iters, 256, 256)
    if not os.path.exists('/dev/kfd'): print(name); return
    k = AsmKernel(co, "mb_kernel"); out = DeviceBuffer(1 << 20); ka = pack_ptr_kernargs([out.ptr])
    res = []
    for it in range(6):
        hip_check(_hip.hipMemset(big._ptr, it, 256 << 20))
        k.launch((256,1,1),(blk,1,1),ka,65536)
        hip_check(_hip.hipDeviceSynchronize())
        o = out.to_numpy(np.uint32, (1 << 18,)).reshape(-1, 2)
        v = np.array([o[g*16+w] for g in range(256) for w in range(blk//64-4, blk//64)], dtype=np.float64)
        res.append((np.median(v[:,0]), np.median(v[:,1])))
    r = np.median(np.array(res), axis=0)
    print(f"{name:28s} cycles={r[0]:.0f} per-step={r[0]/iters/nst/(blk//256):.1f} time_us={r[1]/100:.2f} clock={r[0]/r[1]/10:.3f} GHz")

INI = init("zero") + "\n    v_lshrrev_b32 v119, 6, v0\n    s_nop 1\n    v_readfirstlane_b32 s30, v119\n    v_mov_b32 v230, 0\n    ds_write_b32 v230, v230\n"
def partner(kind, pa):
    pre = [f"s_setprio {pa}"]
    chk = ["ds_read_b32 v231, v230", "s_waitcnt lgkmcnt(0)", "v_cmp_gt_u32 vcc, s31, v231", "s_cbranch_vccnz LA"]
    if kind == "idle": return pre
    if kind == "spin": return pre + ["LA:"] + chk
    if kind == "sleep8": return pre + ["LA:", "s_sleep 8"] + chk
    if kind == "salu": return pre + ["LA:"] + ["s_add_u32 s33, s33, 1"] * 64 + chk
    if kind == "dma": return pre + ["s_mov_b32 m0, 32768", "LA:"] + ["buffer_load_dwordx4 v122, s[8:11], 0 offen lds"] * 8 + ["s_waitcnt vmcnt(8)"] + chk
    if kind.startswith("dmaw"):
        n = int(kind[4:])
        l = []
        for i in range(16):
            l += [f"buffer_load_dwordx4 v229, s[8:11], s34 offen lds", "s_add_u32 s34, s34, 128", "s_and_b32 s34, s34, 0x3ff", f"s_waitcnt vmcnt({n})"]
        return pre + ["s_mov_b32 m0, 32768", "s_mov_b32 s34, 0", "LA:"] + l + ["s_add_u32 s35, s35, 1"] + chk
    if kind == "dsrd": return pre + ["LA:"] + [f"ds_read_b64_tr_b16 v[{232+2*(i%4)}:{233+2*(i%4)}], v122 offset:{i*512}" for i in range(12)] + chk
def body4(kind, pa, pb):
    A = partner(kind, pa)
    o = ["s_add_u32 s31, s31, 4", "s_cmp_ge_u32 s30, 4", "s_cbranch_scc1 LB"] + A + ["s_branch LJ", "LB:", f"s_setprio {pb}"]
    b = "\n".join(("    " + x) for x in o) + "\n" + body3(128, "nowait2") + "\n"
    b += "    s_mov_b64 exec, 1\n    v_mov_b32 v231, 1\n    ds_add_u32 v230, v231\n    s_mov_b64 exec, -1\nLJ:"
    return b
INI2 = INI + "    s_mov_b32 s31, 0\n    s_mov_b32 s35, 0\n    v_lshrrev_b32 v229, 2, v0\n    v_mul_u32_u24 v229, 1280, v229\n    v_and_b32 v228, 3, v0\n    v_lshl_add_u32 v229, v228, 4, v229\n"

def bsteps(nst, mode):
    o=[]
    hi, lo = "s_setprio 2", "s_setprio 0"
    for n in range(nst):
        S=AS[n%2]; T=n//2
        e=lambda k:f"v_exp_f32 v{S+k}, v{S+k}"
        c=lambda k:f"v_cvt_pk_bf16_f32 v{AP+k}, v{S+2*k}, v{S+2*k+1}"
        r = (vr(T+1) + kr(T+1)) if n % 2 else []
        g = lambda k: r[k:k+1]
        w = [] if n % 2 else ["s_waitcnt lgkmcnt(0)"]
        if mode == "plain":
            o += [qk16(n+1)]+g(0)+[e(0),e(1),e(2),e(3),c(0), qk8(n+1)]+g(1)+[e(4),e(5),c(1),e(6),e(7), pv(n-1,1)]+g(2)+[c(2),e(8),e(9),c(3),e(10),e(11)]+w+[pv(n,0)]+g(3)+[c(4),e(12),e(13),c(5),e(14),e(15),c(6),c(7)]
        elif mode == "late":
            o += [qk16(n+1), e(0),e(1),e(2)]+g(0)+[e(3),c(0),e(4), qk8(n+1), e(5),c(1),e(6),e(7)]+g(1)+[c(2), e(8), pv(n-1,1), c(3),e(9),e(10)]+w+g(2)+[e(11), pv(n,0), c(4),e(12),e(13),c(5)]+g(3)+[e(14),e(15),c(6),c(7)]
        elif mode == "win":
            o += [hi, qk16(n+1), e(0),e(1),e(2), qk8(n+1)]+g(0)+[e(3),c(0),e(4),e(5), pv(n-1,1)]+g(1)+[c(1),e(6),e(7),c(2),c(3)]+w+[e(8), pv(n,0)]+g(2)+g(3)+[e(9),e(10),e(11), lo, c(4),e(12),e(13),c(5),e(14),e(15),c(6),c(7)]
        elif mode == "win2":
            o += [hi, qk16(n+1), e(0),e(1),e(2), qk8(n+1)]+g(0)+[e(3),c(0),e(4),e(5), pv(n-1,1)]+g(1)+[c(1),e(6),e(7),c(2),c(3)]+w+[e(8), pv(n,0)]+g(2)+g(3)+[e(9),e(10),e(11),c(4),e(12),e(13), lo, c(5),e(14),e(15),c(6),c(7)]
    return o
def agemm(n):
    o=[]
    for i in range(n):
        A=48+4*(i%16)
        o.append(f"v_mfma_f32_16x16x32_bf16 {r4(A)}, {r4(16+4*(i%2))}, {r4(160+4*(i%4))}, {r4(A)}")
        o.append(f"ds_read_b64_tr_b16 {r2(180+2*(i%16))}, v122 offset:{(i%32)*512}")
        if i%4==3: o.append("s_waitcnt lgkmcnt(8)")
    return o
def run4(name, mode, pa, pb):
    o = ["s_cmp_ge_u32 s30, 4", "s_cbranch_scc1 LB", f"s_setprio {pa}"] + agemm(320) + ["s_branch LJ", "LB:", f"s_setprio {pb}"] + bsteps(128, mode) + ["LJ:"]
    b = "\n".join("    " + x for x in o)
    co = build(name, b, INI2, 256, 512, 65536, 1, 256, 256)
    if not os.path.exists('/dev/kfd'): print(name); return
    k = AsmKernel(co, "mb_kernel"); out = DeviceBuffer(1 << 20); ka = pack_ptr_kernargs([out.ptr])
    for it in range(4):
        k.launch((256,1,1),(512,1,1),ka,65536)
        hip_check(_hip.hipDeviceSynchronize())
    o = out.to_numpy(np.uint32, (1 << 18,)).reshape(-1, 2)
    va = np.median([o[g*16+w][0] for g in range(256) for w in range(4)]); vb = np.median([o[g*16+w][0] for g in range(256) for w in range(4, 8)])
    print(f"{name:24s} A time={va:.0f}  B time={vb:.0f}")
for mode, pa, pb in (("plain",0,2),("plain",3,2),("late",0,2),("win",1,2),("win2",1,2)):
    run4(f"{mode} pa{pa}", mode, pa, pb)
```

```python
import micro, os, sys
from micro import *
from cdna_launch import _hip
import numpy as np
H = micro.HDR
H = H.replace("    s_memtime s[12:13]\n", "    s_memtime s[12:13]\n    s_memrealtime s[22:23]\n")
H = H.replace("    s_memtime s[14:15]\n", "    s_memtime s[14:15]\n    s_memrealtime s[24:25]\n")
H = H.replace("    s_subb_u32 s17, s15, s13\n", "    s_sub_u32 s17, s24, s22\n")
micro.HDR = H
AQ=[16,24]; AS=[64,80]; AP=96; AO=[128,144]; KF=[32,40]; VFB=[160,168]
r4=lambda b:f"v[{b}:{b+3}]"; r2=lambda b:f"v[{b}:{b+1}]"; r16=lambda b:f"v[{b}:{b+15}]"
def qk16(n): return f"v_mfma_f32_32x32x16_bf16 {r16(AS[n%2])}, {r4(KF[(n//2)%2])}, {r4(AQ[n%2])}, 0"
def qk8(n):
    S=AS[n%2]; return f"v_mfma_f32_32x32x8_bf16 {r16(S)}, {r2(KF[(n//2)%2]+4)}, {r2(AQ[n%2]+4)}, {r16(S)}"
def pv(n,s):
    O=AO[n%2]; return f"v_mfma_f32_32x32x16_bf16 {r16(O)}, {r4(VFB[(n//2)%2]+4*s)}, {r4(AP+4*s)}, {r16(O)}"
def rnd(reg, seed, mask="0xbfffbfff", orv="0x3c003c00"):
    return f"""    v_xor_b32 v{reg}, {hex(seed)}, v0
    v_mul_lo_u32 v{reg}, v{reg}, s28
    v_lshrrev_b32 v118, 13, v{reg}
    v_xor_b32 v{reg}, v{reg}, v118
    v_mul_lo_u32 v{reg}, v{reg}, s28
    v_and_b32 v{reg}, 0x83ff83ff, v{reg}
    v_or_b32 v{reg}, {orv}, v{reg}"""
def init(vmode):
    l = [init_regs(119)] + [f"    v_mov_b32 v{i}, 0" for i in range(128, 190)] + ["    s_mov_b32 s28, 0x9e3779b1"]
    for r in list(range(16, 22)) + list(range(24, 30)) + list(range(32, 38)) + list(range(40, 46)) + list(range(160, 176)):
        l.append(rnd(r, 0x1234 + 977 * r))
    l.append("    s_mov_b32 exec_lo, 0")
    for r in (36, 44): l.append(f"    v_mov_b32 v{r}, 0x3f80\n    v_mov_b32 v{r+1}, 0")
    for r in (20, 28): l.append(f"    v_mov_b32 v{r}, 0xc120\n    v_mov_b32 v{r+1}, 0")
    m = 0xfff00000 if vmode != "rand" else 0
    if m:
        l.append(f"    s_mov_b32 exec_lo, {hex(m)}\n    s_mov_b32 exec_hi, {hex(m)}")
        for r in range(160, 176): l.append(f"    v_mov_b32 v{r}, 0x3f803f80")
        if vmode == "zero":
            l.append(f"    s_mov_b32 exec_lo, 0xffe00000\n    s_mov_b32 exec_hi, 0xffe00000")
            for r in range(160, 176): l.append(f"    v_mov_b32 v{r}, 0")
    l.append("    s_mov_b64 exec, -1")
    return "\n".join(l)
def body(mf=True, va=True):
    o=[]
    for n in range(8):
        S=AS[n%2]
        e=lambda k:f"v_exp_f32 v{S+k}, v{S+k}"
        c=lambda k:f"v_cvt_pk_bf16_f32 v{AP+k}, v{S+2*k}, v{S+2*k+1}"
        seq = [qk16(n+1), e(0),e(1),e(2),e(3),c(0), qk8(n+1), e(4),e(5),c(1),e(6),e(7), pv(n-1,1), c(2),e(8),e(9),c(3),e(10),e(11), pv(n,0), c(4),e(12),e(13),c(5),e(14),e(15),c(6),c(7)]
        o += [x for x in seq if (mf or "mfma" not in x) and (va or "mfma" in x)]
    return "\n".join("    "+x for x in o)
def run2(name, b, ini, iters):
    co = build(name, b, ini, 256, 512, 0, iters, 192, 192)
    if not os.path.exists('/dev/kfd'): print(name); return
    k = AsmKernel(co, "mb_kernel"); out = DeviceBuffer(1 << 20); ka = pack_ptr_kernargs([out.ptr])
    res = []
    for it in range(8):
        hip_check(_hip.hipMemset(big._ptr, it, 256 << 20))
        k.launch((256,1,1),(512,1,1),ka,0)
        hip_check(_hip.hipDeviceSynchronize())
        o = out.to_numpy(np.uint32, (1 << 18,)).reshape(-1, 2)
        v = np.array([o[g*16+w] for g in range(256) for w in range(4, 8)], dtype=np.float64)
        res.append((np.median(v[:,0]), np.median(v[:,1])))
    r = np.median(np.array(res), axis=0)
    print(f"{name:28s} cycles={r[0]:.0f} time_us={r[1]/100:.2f} clock={r[0]/r[1]/10:.3f} GHz")
if os.path.exists('/dev/kfd'): big = DeviceBuffer(256 << 20)


def kr(T): return [f"ds_read_b128 {r4(200)}, v122 offset:{(T%4)*2640}", f"ds_read_b64 {r2(204)}, v122 offset:{(T%4)*2640+1024}"]
def vr(T): return [f"ds_read_b128 {r4(208)}, v122 offset:{(T%4)*2640+1296}", f"ds_read_b128 {r4(212)}, v122 offset:{(T%4)*2640+1968}"]
def body3(nst, mode, pad=0):
    o=["s_nop 0"]*pad
    for n in range(nst):
        S=AS[n%2]; T=n//2
        e=lambda k:f"v_exp_f32 v{S+k}, v{S+k}"
        c=lambda k:f"v_cvt_pk_bf16_f32 v{AP+k}, v{S+2*k}, v{S+2*k+1}"
        rd = kr(T+1) if n%2==0 else vr(T+1)
        if mode == "base":
            o += ["s_waitcnt lgkmcnt(0)", qk16(n+1), rd[0], e(0),e(1),e(2),e(3),c(0), qk8(n+1), rd[1], e(4),e(5),c(1),e(6),e(7), pv(n-1,1), c(2),e(8),e(9),c(3),e(10),e(11), pv(n,0), c(4),e(12),e(13),c(5),e(14),e(15),c(6),c(7)]
        elif mode == "nowait2":
            if n % 2 == 0:
                r = kr(T+1) + vr(T+1)
                o += [qk16(n+1), r[0], e(0),e(1),e(2),e(3),c(0), qk8(n+1), r[1], e(4),e(5),c(1),e(6),e(7), pv(n-1,1), r[2], c(2),e(8),e(9),c(3),e(10),e(11), pv(n,0), r[3], c(4),e(12),e(13),c(5),e(14),e(15),c(6),c(7)]
            else:
                o += ["s_waitcnt lgkmcnt(0)", qk16(n+1), e(0),e(1),e(2),e(3),c(0), qk8(n+1), e(4),e(5),c(1),e(6),e(7), pv(n-1,1), c(2),e(8),e(9),c(3),e(10),e(11), pv(n,0), c(4),e(12),e(13),c(5),e(14),e(15),c(6),c(7)]
        elif mode == "aligned":
            o += [ e(0), "s_waitcnt lgkmcnt(0)", qk16(n+1), rd[0], e(1),e(2),c(0), e(3).replace("v_exp_f32","v_exp_f32_e64"), qk8(n+1), rd[1], e(4),e(5),c(1),e(6),e(7), pv(n-1,1), c(2),e(8),e(9),c(3),e(10),e(11), pv(n,0), c(4),e(12),e(13),c(5),e(14),e(15),c(6),c(7)]
        elif mode == "nods":
            o += [qk16(n+1), e(0),e(1),e(2),e(3),c(0), qk8(n+1), e(4),e(5),c(1),e(6),e(7), pv(n-1,1), c(2),e(8),e(9),c(3),e(10),e(11), pv(n,0), c(4),e(12),e(13),c(5),e(14),e(15),c(6),c(7)]
    return "\n".join("    "+x for x in o)
def run3(name, b, ini, iters, blk, nst):
    co = build(name, b, ini, 256, blk, 65536, iters, 256, 256)
    if not os.path.exists('/dev/kfd'): print(name); return
    k = AsmKernel(co, "mb_kernel"); out = DeviceBuffer(1 << 20); ka = pack_ptr_kernargs([out.ptr])
    res = []
    for it in range(6):
        hip_check(_hip.hipMemset(big._ptr, it, 256 << 20))
        k.launch((256,1,1),(blk,1,1),ka,65536)
        hip_check(_hip.hipDeviceSynchronize())
        o = out.to_numpy(np.uint32, (1 << 18,)).reshape(-1, 2)
        v = np.array([o[g*16+w] for g in range(256) for w in range(blk//64-4, blk//64)], dtype=np.float64)
        res.append((np.median(v[:,0]), np.median(v[:,1])))
    r = np.median(np.array(res), axis=0)
    print(f"{name:28s} cycles={r[0]:.0f} per-step={r[0]/iters/nst/(blk//256):.1f} time_us={r[1]/100:.2f} clock={r[0]/r[1]/10:.3f} GHz")

def body5(nst, kind):
    SB = [64, 192]
    o = []
    for n in range(nst):
        T = n // 2; x = n % 2
        S = SB[T % 2] + 16 * x
        Sn = SB[(T + 1) % 2]
        e=lambda k:f"v_exp_f32 v{S+k}, v{S+k}"
        c=lambda k:f"v_cvt_pk_bf16_f32 v{AP+k}, v{S+2*k}, v{S+2*k+1}"
        K = KF[(T + 1) % 2]
        if kind == "2b":
            if x == 0:
                m0 = [f"v_mfma_f32_32x32x16_bf16 {r16(Sn)}, {r4(K)}, {r4(AQ[0])}, v[224:239]"]
                m1 = [f"v_mfma_f32_32x32x16_bf16 {r16(Sn+16)}, {r4(K)}, {r4(AQ[1])}, v[240:255]"]
            else:
                m0 = [f"v_mfma_f32_32x32x4_2b_bf16 v[{Sn}:{Sn+31}], {r2(K+4)}, {r2(AQ[0]+4)}, v[{Sn}:{Sn+31}]"]
                m1 = []
        else:
            S1 = Sn + 16 * x
            m0 = [f"v_mfma_f32_32x32x16_bf16 {r16(S1)}, {r4(K)}, {r4(AQ[x])}, 0"]
            m1 = [f"v_mfma_f32_32x32x8_bf16 {r16(S1)}, {r2(K+4)}, {r2(AQ[x]+4)}, {r16(S1)}"]
        o += m0 + [e(0),e(1),e(2),e(3),c(0)] + m1 + [e(4),e(5),c(1),e(6),e(7), pv(n-1,1), c(2),e(8),e(9),c(3),e(10),e(11), pv(n,0), c(4),e(12),e(13),c(5),e(14),e(15),c(6),c(7)]
    return "\n".join("    "+x for x in o)
INI5 = init("zero") + "\n" + "\n".join(f"    v_mov_b32 v{i}, 0xc1200000" for i in range(192, 256))
for rep in range(2):
    for kind in ("x8", "2b"):
        run3(f"solo {kind}", body5(32, kind), INI5, 4, 256, 32)
    run3("solo x8 ones", body5(32, "x8"), INI5.replace(init("zero"), init("ones")), 4, 256, 32)
```

```python
import micro, os, sys
from micro import *
from cdna_launch import _hip
import numpy as np
H = micro.HDR
H = H.replace("    s_memtime s[12:13]\n", "    s_memtime s[12:13]\n    s_memrealtime s[22:23]\n")
H = H.replace("    s_memtime s[14:15]\n", "    s_memtime s[14:15]\n    s_memrealtime s[24:25]\n")
H = H.replace("    s_subb_u32 s17, s15, s13\n", "    s_sub_u32 s17, s24, s22\n")
micro.HDR = H
AQ=[16,24]; AS=[64,80]; AP=96; AO=[128,144]; KF=[32,40]; VFB=[160,168]
r4=lambda b:f"v[{b}:{b+3}]"; r2=lambda b:f"v[{b}:{b+1}]"; r16=lambda b:f"v[{b}:{b+15}]"
def qk16(n): return f"v_mfma_f32_32x32x16_bf16 {r16(AS[n%2])}, {r4(KF[(n//2)%2])}, {r4(AQ[n%2])}, 0"
def qk8(n):
    S=AS[n%2]; return f"v_mfma_f32_32x32x8_bf16 {r16(S)}, {r2(KF[(n//2)%2]+4)}, {r2(AQ[n%2]+4)}, {r16(S)}"
def pv(n,s):
    O=AO[n%2]; return f"v_mfma_f32_32x32x16_bf16 {r16(O)}, {r4(VFB[(n//2)%2]+4*s)}, {r4(AP+4*s)}, {r16(O)}"
def rnd(reg, seed, mask="0xbfffbfff", orv="0x3c003c00"):
    return f"""    v_xor_b32 v{reg}, {hex(seed)}, v0
    v_mul_lo_u32 v{reg}, v{reg}, s28
    v_lshrrev_b32 v118, 13, v{reg}
    v_xor_b32 v{reg}, v{reg}, v118
    v_mul_lo_u32 v{reg}, v{reg}, s28
    v_and_b32 v{reg}, 0x83ff83ff, v{reg}
    v_or_b32 v{reg}, {orv}, v{reg}"""
def init(vmode):
    l = [init_regs(119)] + [f"    v_mov_b32 v{i}, 0" for i in range(128, 190)] + ["    s_mov_b32 s28, 0x9e3779b1"]
    for r in list(range(16, 22)) + list(range(24, 30)) + list(range(32, 38)) + list(range(40, 46)) + list(range(160, 176)):
        l.append(rnd(r, 0x1234 + 977 * r))
    l.append("    s_mov_b32 exec_lo, 0")
    for r in (36, 44): l.append(f"    v_mov_b32 v{r}, 0x3f80\n    v_mov_b32 v{r+1}, 0")
    for r in (20, 28): l.append(f"    v_mov_b32 v{r}, 0xc120\n    v_mov_b32 v{r+1}, 0")
    m = 0xfff00000 if vmode != "rand" else 0
    if m:
        l.append(f"    s_mov_b32 exec_lo, {hex(m)}\n    s_mov_b32 exec_hi, {hex(m)}")
        for r in range(160, 176): l.append(f"    v_mov_b32 v{r}, 0x3f803f80")
        if vmode == "zero":
            l.append(f"    s_mov_b32 exec_lo, 0xffe00000\n    s_mov_b32 exec_hi, 0xffe00000")
            for r in range(160, 176): l.append(f"    v_mov_b32 v{r}, 0")
    l.append("    s_mov_b64 exec, -1")
    return "\n".join(l)
def body(mf=True, va=True):
    o=[]
    for n in range(8):
        S=AS[n%2]
        e=lambda k:f"v_exp_f32 v{S+k}, v{S+k}"
        c=lambda k:f"v_cvt_pk_bf16_f32 v{AP+k}, v{S+2*k}, v{S+2*k+1}"
        seq = [qk16(n+1), e(0),e(1),e(2),e(3),c(0), qk8(n+1), e(4),e(5),c(1),e(6),e(7), pv(n-1,1), c(2),e(8),e(9),c(3),e(10),e(11), pv(n,0), c(4),e(12),e(13),c(5),e(14),e(15),c(6),c(7)]
        o += [x for x in seq if (mf or "mfma" not in x) and (va or "mfma" in x)]
    return "\n".join("    "+x for x in o)
def run2(name, b, ini, iters):
    co = build(name, b, ini, 256, 512, 0, iters, 192, 192)
    if not os.path.exists('/dev/kfd'): print(name); return
    k = AsmKernel(co, "mb_kernel"); out = DeviceBuffer(1 << 20); ka = pack_ptr_kernargs([out.ptr])
    res = []
    for it in range(8):
        hip_check(_hip.hipMemset(big._ptr, it, 256 << 20))
        k.launch((256,1,1),(512,1,1),ka,0)
        hip_check(_hip.hipDeviceSynchronize())
        o = out.to_numpy(np.uint32, (1 << 18,)).reshape(-1, 2)
        v = np.array([o[g*16+w] for g in range(256) for w in range(4, 8)], dtype=np.float64)
        res.append((np.median(v[:,0]), np.median(v[:,1])))
    r = np.median(np.array(res), axis=0)
    print(f"{name:28s} cycles={r[0]:.0f} time_us={r[1]/100:.2f} clock={r[0]/r[1]/10:.3f} GHz")
if os.path.exists('/dev/kfd'): big = DeviceBuffer(256 << 20)


def kr(T): return [f"ds_read_b128 {r4(200)}, v122 offset:{(T%4)*2640}", f"ds_read_b64 {r2(204)}, v122 offset:{(T%4)*2640+1024}"]
def vr(T): return [f"ds_read_b128 {r4(208)}, v122 offset:{(T%4)*2640+1296}", f"ds_read_b128 {r4(212)}, v122 offset:{(T%4)*2640+1968}"]
def body3(nst, mode, pad=0):
    o=["s_nop 0"]*pad
    for n in range(nst):
        S=AS[n%2]; T=n//2
        e=lambda k:f"v_exp_f32 v{S+k}, v{S+k}"
        c=lambda k:f"v_cvt_pk_bf16_f32 v{AP+k}, v{S+2*k}, v{S+2*k+1}"
        rd = kr(T+1) if n%2==0 else vr(T+1)
        if mode == "base":
            o += ["s_waitcnt lgkmcnt(0)", qk16(n+1), rd[0], e(0),e(1),e(2),e(3),c(0), qk8(n+1), rd[1], e(4),e(5),c(1),e(6),e(7), pv(n-1,1), c(2),e(8),e(9),c(3),e(10),e(11), pv(n,0), c(4),e(12),e(13),c(5),e(14),e(15),c(6),c(7)]
        elif mode == "nowait2":
            if n % 2 == 0:
                r = kr(T+1) + vr(T+1)
                o += [qk16(n+1), r[0], e(0),e(1),e(2),e(3),c(0), qk8(n+1), r[1], e(4),e(5),c(1),e(6),e(7), pv(n-1,1), r[2], c(2),e(8),e(9),c(3),e(10),e(11), pv(n,0), r[3], c(4),e(12),e(13),c(5),e(14),e(15),c(6),c(7)]
            else:
                o += ["s_waitcnt lgkmcnt(0)", qk16(n+1), e(0),e(1),e(2),e(3),c(0), qk8(n+1), e(4),e(5),c(1),e(6),e(7), pv(n-1,1), c(2),e(8),e(9),c(3),e(10),e(11), pv(n,0), c(4),e(12),e(13),c(5),e(14),e(15),c(6),c(7)]
        elif mode == "aligned":
            o += [ e(0), "s_waitcnt lgkmcnt(0)", qk16(n+1), rd[0], e(1),e(2),c(0), e(3).replace("v_exp_f32","v_exp_f32_e64"), qk8(n+1), rd[1], e(4),e(5),c(1),e(6),e(7), pv(n-1,1), c(2),e(8),e(9),c(3),e(10),e(11), pv(n,0), c(4),e(12),e(13),c(5),e(14),e(15),c(6),c(7)]
        elif mode == "nods":
            o += [qk16(n+1), e(0),e(1),e(2),e(3),c(0), qk8(n+1), e(4),e(5),c(1),e(6),e(7), pv(n-1,1), c(2),e(8),e(9),c(3),e(10),e(11), pv(n,0), c(4),e(12),e(13),c(5),e(14),e(15),c(6),c(7)]
    return "\n".join("    "+x for x in o)
def run3(name, b, ini, iters, blk, nst):
    co = build(name, b, ini, 256, blk, 65536, iters, 256, 256)
    if not os.path.exists('/dev/kfd'): print(name); return
    k = AsmKernel(co, "mb_kernel"); out = DeviceBuffer(1 << 20); ka = pack_ptr_kernargs([out.ptr])
    res = []
    for it in range(6):
        hip_check(_hip.hipMemset(big._ptr, it, 256 << 20))
        k.launch((256,1,1),(blk,1,1),ka,65536)
        hip_check(_hip.hipDeviceSynchronize())
        o = out.to_numpy(np.uint32, (1 << 18,)).reshape(-1, 2)
        v = np.array([o[g*16+w] for g in range(256) for w in range(blk//64-4, blk//64)], dtype=np.float64)
        res.append((np.median(v[:,0]), np.median(v[:,1])))
    r = np.median(np.array(res), axis=0)
    print(f"{name:28s} cycles={r[0]:.0f} per-step={r[0]/iters/nst/(blk//256):.1f} time_us={r[1]/100:.2f} clock={r[0]/r[1]/10:.3f} GHz")

INI = init("zero") + "\n    v_lshrrev_b32 v119, 6, v0\n    s_nop 1\n    v_readfirstlane_b32 s30, v119\n    v_mov_b32 v230, 0\n    ds_write_b32 v230, v230\n"
def partner(kind, pa):
    pre = [f"s_setprio {pa}"]
    chk = ["ds_read_b32 v231, v230", "s_waitcnt lgkmcnt(0)", "v_cmp_gt_u32 vcc, s31, v231", "s_cbranch_vccnz LA"]
    if kind == "idle": return pre
    if kind == "spin": return pre + ["LA:"] + chk
    if kind == "sleep8": return pre + ["LA:", "s_sleep 8"] + chk
    if kind == "salu": return pre + ["LA:"] + ["s_add_u32 s33, s33, 1"] * 64 + chk
    if kind == "dma": return pre + ["s_mov_b32 m0, 32768", "LA:"] + ["buffer_load_dwordx4 v122, s[8:11], 0 offen lds"] * 8 + ["s_waitcnt vmcnt(8)"] + chk
    if kind.startswith("dmaw"):
        n = int(kind[4:])
        l = []
        for i in range(16):
            l += [f"buffer_load_dwordx4 v229, s[8:11], s34 offen lds", "s_add_u32 s34, s34, 128", "s_and_b32 s34, s34, 0x3ff", f"s_waitcnt vmcnt({n})"]
        return pre + ["s_mov_b32 m0, 32768", "s_mov_b32 s34, 0", "LA:"] + l + ["s_add_u32 s35, s35, 1"] + chk
    if kind == "dsrd": return pre + ["LA:"] + [f"ds_read_b64_tr_b16 v[{232+2*(i%4)}:{233+2*(i%4)}], v122 offset:{i*512}" for i in range(12)] + chk
def body4(kind, pa, pb):
    A = partner(kind, pa)
    o = ["s_add_u32 s31, s31, 4", "s_cmp_ge_u32 s30, 4", "s_cbranch_scc1 LB"] + A + ["s_branch LJ", "LB:", f"s_setprio {pb}"]
    b = "\n".join(("    " + x) for x in o) + "\n" + body3(128, "nowait2") + "\n"
    b += "    s_mov_b64 exec, 1\n    v_mov_b32 v231, 1\n    ds_add_u32 v230, v231\n    s_mov_b64 exec, -1\nLJ:"
    return b
INI2 = INI + "    s_mov_b32 s31, 0\n    s_mov_b32 s35, 0\n    v_lshrrev_b32 v229, 2, v0\n    v_mul_u32_u24 v229, 1280, v229\n    v_and_b32 v228, 3, v0\n    v_lshl_add_u32 v229, v228, 4, v229\n"

def bsteps(nst, mode):
    o=[]
    hi, lo = "s_setprio 2", "s_setprio 0"
    for n in range(nst):
        S=AS[n%2]; T=n//2
        e=lambda k:f"v_exp_f32 v{S+k}, v{S+k}"
        c=lambda k:f"v_cvt_pk_bf16_f32 v{AP+k}, v{S+2*k}, v{S+2*k+1}"
        r = (vr(T+1) + kr(T+1)) if n % 2 else []
        g = lambda k: r[k:k+1]
        w = [] if n % 2 else ["s_waitcnt lgkmcnt(0)"]
        if mode == "plain":
            o += [qk16(n+1)]+g(0)+[e(0),e(1),e(2),e(3),c(0), qk8(n+1)]+g(1)+[e(4),e(5),c(1),e(6),e(7), pv(n-1,1)]+g(2)+[c(2),e(8),e(9),c(3),e(10),e(11)]+w+[pv(n,0)]+g(3)+[c(4),e(12),e(13),c(5),e(14),e(15),c(6),c(7)]
        elif mode == "late":
            o += [qk16(n+1), e(0),e(1),e(2)]+g(0)+[e(3),c(0),e(4), qk8(n+1), e(5),c(1),e(6),e(7)]+g(1)+[c(2), e(8), pv(n-1,1), c(3),e(9),e(10)]+w+g(2)+[e(11), pv(n,0), c(4),e(12),e(13),c(5)]+g(3)+[e(14),e(15),c(6),c(7)]
        elif mode == "cl1":
            o += [qk16(n+1), e(0),e(1),e(2), qk8(n+1), e(3),c(0),e(4),e(5), pv(n-1,1), c(1),e(6),e(7),c(2),c(3)]+w+[e(8), pv(n,0), e(9),e(10),e(11)]+g(0)+g(1)+[c(4),e(12),e(13),c(5)]+g(2)+g(3)+[e(14),e(15),c(6),c(7)]
        elif mode == "cl2":
            o += [pv(n-1,0), e(0),e(1),e(2), pv(n-1,1), e(3),e(4),e(5), qk16(n+1), e(6),e(7),e(8), qk8(n+1), e(9),e(10),e(11),c(0)]+g(0)+g(1)+w+[c(1),c(2),c(3),c(4),e(12),e(13)]+g(2)+g(3)+[c(5),e(14),e(15),c(6),c(7)]
        elif mode == "cl3":
            o += [qk16(n+1), e(0),e(1),e(2), qk8(n+1), e(3),c(0),e(4),e(5)]+g(0)+g(1)+[c(1),e(6),e(7),c(2),c(3),e(8)]+w+[pv(n-1,1), e(9),e(10),e(11), pv(n,0), c(4),e(12),e(13),c(5)]+g(2)+g(3)+[e(14),e(15),c(6),c(7)]
        elif mode == "win":
            o += [hi, qk16(n+1), e(0),e(1),e(2), qk8(n+1)]+g(0)+[e(3),c(0),e(4),e(5), pv(n-1,1)]+g(1)+[c(1),e(6),e(7),c(2),c(3)]+w+[e(8), pv(n,0)]+g(2)+g(3)+[e(9),e(10),e(11), lo, c(4),e(12),e(13),c(5),e(14),e(15),c(6),c(7)]
        elif mode == "win2":
            o += [hi, qk16(n+1), e(0),e(1),e(2), qk8(n+1)]+g(0)+[e(3),c(0),e(4),e(5), pv(n-1,1)]+g(1)+[c(1),e(6),e(7),c(2),c(3)]+w+[e(8), pv(n,0)]+g(2)+g(3)+[e(9),e(10),e(11),c(4),e(12),e(13), lo, c(5),e(14),e(15),c(6),c(7)]
    return o
def agemm(n):
    o=[]
    for i in range(n):
        A=48+4*(i%16)
        o.append(f"v_mfma_f32_16x16x32_bf16 {r4(A)}, {r4(16+4*(i%2))}, {r4(160+4*(i%4))}, {r4(A)}")
        o.append(f"ds_read_b64_tr_b16 {r2(180+2*(i%16))}, v122 offset:{(i%32)*512}")
        if i%4==3: o.append("s_waitcnt lgkmcnt(8)")
    return o
def agemm_big(n, nrd):
    o=[]
    for i in range(n):
        A=48+16*(i%4)
        o.append(f"v_mfma_f32_32x32x16_bf16 {r16(A)}, {r4(16+4*(i%2))}, {r4(160+4*(i%4))}, {r16(A)}")
        for k in range(nrd):
            o.append(f"ds_read_b64_tr_b16 {r2(180+2*((2*i+k)%16))}, v122 offset:{((2*i+k)%32)*512}")
        if i%2==1: o.append("s_waitcnt lgkmcnt(8)")
    return o
def agemm0(n):
    return [x for x in agemm(n) if "mfma" in x]
def run4(name, mode, pa, pb, G=None):
    o = ["s_cmp_ge_u32 s30, 4", "s_cbranch_scc1 LB", f"s_setprio {pa}"] + (G if G is not None else agemm(320)) + ["s_branch LJ", "LB:", f"s_setprio {pb}"] + bsteps(128, mode) + ["LJ:"]
    b = "\n".join("    " + x for x in o)
    co = build(name, b, INI2, 256, 512, 65536, 1, 256, 256)
    if not os.path.exists('/dev/kfd'): print(name); return
    k = AsmKernel(co, "mb_kernel"); out = DeviceBuffer(1 << 20); ka = pack_ptr_kernargs([out.ptr])
    for it in range(4):
        k.launch((256,1,1),(512,1,1),ka,65536)
        hip_check(_hip.hipDeviceSynchronize())
    o = out.to_numpy(np.uint32, (1 << 18,)).reshape(-1, 2)
    va = np.median([o[g*16+w][0] for g in range(256) for w in range(4)]); vb = np.median([o[g*16+w][0] for g in range(256) for w in range(4, 8)])
    print(f"{name:24s} A time={va:.0f}  B time={vb:.0f}")
for mode in ("plain", "cl1", "cl2", "cl3"):
    run4(f"{mode} none", mode, 0, 2, [])
    run4(f"{mode} small", mode, 0, 2)
    run4(f"{mode} big", mode, 0, 2, agemm_big(160, 2))
    G = []
    for i, x in enumerate(agemm_big(160, 2)):
        G.append(x.replace("lgkmcnt(8)", "lgkmcnt(0)"))
    run4(f"{mode} big paced", mode, 0, 2, G)
```

```python
import micro, os, sys
from micro import *
from cdna_launch import _hip
import numpy as np
H = micro.HDR
H = H.replace("    s_memtime s[12:13]\n", "    s_memtime s[12:13]\n    s_memrealtime s[22:23]\n")
H = H.replace("    s_memtime s[14:15]\n", "    s_memtime s[14:15]\n    s_memrealtime s[24:25]\n")
H = H.replace("    s_subb_u32 s17, s15, s13\n", "    s_sub_u32 s17, s24, s22\n")
micro.HDR = H
AQ=[16,24]; AS=[64,80]; AP=96; AO=[128,144]; KF=[32,40]; VFB=[160,168]
r4=lambda b:f"v[{b}:{b+3}]"; r2=lambda b:f"v[{b}:{b+1}]"; r16=lambda b:f"v[{b}:{b+15}]"
def qk16(n): return f"v_mfma_f32_32x32x16_bf16 {r16(AS[n%2])}, {r4(KF[(n//2)%2])}, {r4(AQ[n%2])}, 0"
def qk8(n):
    S=AS[n%2]; return f"v_mfma_f32_32x32x8_bf16 {r16(S)}, {r2(KF[(n//2)%2]+4)}, {r2(AQ[n%2]+4)}, {r16(S)}"
def pv(n,s):
    O=AO[n%2]; return f"v_mfma_f32_32x32x16_bf16 {r16(O)}, {r4(VFB[(n//2)%2]+4*s)}, {r4(AP+4*s)}, {r16(O)}"
def rnd(reg, seed, mask="0xbfffbfff", orv="0x3c003c00"):
    return f"""    v_xor_b32 v{reg}, {hex(seed)}, v0
    v_mul_lo_u32 v{reg}, v{reg}, s28
    v_lshrrev_b32 v118, 13, v{reg}
    v_xor_b32 v{reg}, v{reg}, v118
    v_mul_lo_u32 v{reg}, v{reg}, s28
    v_and_b32 v{reg}, 0x83ff83ff, v{reg}
    v_or_b32 v{reg}, {orv}, v{reg}"""
def init(vmode):
    l = [init_regs(119)] + [f"    v_mov_b32 v{i}, 0" for i in range(128, 190)] + ["    s_mov_b32 s28, 0x9e3779b1"]
    for r in list(range(16, 22)) + list(range(24, 30)) + list(range(32, 38)) + list(range(40, 46)) + list(range(160, 176)):
        l.append(rnd(r, 0x1234 + 977 * r))
    l.append("    s_mov_b32 exec_lo, 0")
    for r in (36, 44): l.append(f"    v_mov_b32 v{r}, 0x3f80\n    v_mov_b32 v{r+1}, 0")
    for r in (20, 28): l.append(f"    v_mov_b32 v{r}, 0xc120\n    v_mov_b32 v{r+1}, 0")
    m = 0xfff00000 if vmode != "rand" else 0
    if m:
        l.append(f"    s_mov_b32 exec_lo, {hex(m)}\n    s_mov_b32 exec_hi, {hex(m)}")
        for r in range(160, 176): l.append(f"    v_mov_b32 v{r}, 0x3f803f80")
        if vmode == "zero":
            l.append(f"    s_mov_b32 exec_lo, 0xffe00000\n    s_mov_b32 exec_hi, 0xffe00000")
            for r in range(160, 176): l.append(f"    v_mov_b32 v{r}, 0")
    l.append("    s_mov_b64 exec, -1")
    return "\n".join(l)
def body(mf=True, va=True):
    o=[]
    for n in range(8):
        S=AS[n%2]
        e=lambda k:f"v_exp_f32 v{S+k}, v{S+k}"
        c=lambda k:f"v_cvt_pk_bf16_f32 v{AP+k}, v{S+2*k}, v{S+2*k+1}"
        seq = [qk16(n+1), e(0),e(1),e(2),e(3),c(0), qk8(n+1), e(4),e(5),c(1),e(6),e(7), pv(n-1,1), c(2),e(8),e(9),c(3),e(10),e(11), pv(n,0), c(4),e(12),e(13),c(5),e(14),e(15),c(6),c(7)]
        o += [x for x in seq if (mf or "mfma" not in x) and (va or "mfma" in x)]
    return "\n".join("    "+x for x in o)
def run2(name, b, ini, iters):
    co = build(name, b, ini, 256, 512, 0, iters, 192, 192)
    if not os.path.exists('/dev/kfd'): print(name); return
    k = AsmKernel(co, "mb_kernel"); out = DeviceBuffer(1 << 20); ka = pack_ptr_kernargs([out.ptr])
    res = []
    for it in range(8):
        hip_check(_hip.hipMemset(big._ptr, it, 256 << 20))
        k.launch((256,1,1),(512,1,1),ka,0)
        hip_check(_hip.hipDeviceSynchronize())
        o = out.to_numpy(np.uint32, (1 << 18,)).reshape(-1, 2)
        v = np.array([o[g*16+w] for g in range(256) for w in range(4, 8)], dtype=np.float64)
        res.append((np.median(v[:,0]), np.median(v[:,1])))
    r = np.median(np.array(res), axis=0)
    print(f"{name:28s} cycles={r[0]:.0f} time_us={r[1]/100:.2f} clock={r[0]/r[1]/10:.3f} GHz")
if os.path.exists('/dev/kfd'): big = DeviceBuffer(256 << 20)


def kr(T): return [f"ds_read_b128 {r4(200)}, v122 offset:{(T%4)*2640}", f"ds_read_b64 {r2(204)}, v122 offset:{(T%4)*2640+1024}"]
def vr(T): return [f"ds_read_b128 {r4(208)}, v122 offset:{(T%4)*2640+1296}", f"ds_read_b128 {r4(212)}, v122 offset:{(T%4)*2640+1968}"]
def body3(nst, mode, pad=0):
    o=["s_nop 0"]*pad
    for n in range(nst):
        S=AS[n%2]; T=n//2
        e=lambda k:f"v_exp_f32 v{S+k}, v{S+k}"
        c=lambda k:f"v_cvt_pk_bf16_f32 v{AP+k}, v{S+2*k}, v{S+2*k+1}"
        rd = kr(T+1) if n%2==0 else vr(T+1)
        if mode == "base":
            o += ["s_waitcnt lgkmcnt(0)", qk16(n+1), rd[0], e(0),e(1),e(2),e(3),c(0), qk8(n+1), rd[1], e(4),e(5),c(1),e(6),e(7), pv(n-1,1), c(2),e(8),e(9),c(3),e(10),e(11), pv(n,0), c(4),e(12),e(13),c(5),e(14),e(15),c(6),c(7)]
        elif mode == "nowait2":
            if n % 2 == 0:
                r = kr(T+1) + vr(T+1)
                o += [qk16(n+1), r[0], e(0),e(1),e(2),e(3),c(0), qk8(n+1), r[1], e(4),e(5),c(1),e(6),e(7), pv(n-1,1), r[2], c(2),e(8),e(9),c(3),e(10),e(11), pv(n,0), r[3], c(4),e(12),e(13),c(5),e(14),e(15),c(6),c(7)]
            else:
                o += ["s_waitcnt lgkmcnt(0)", qk16(n+1), e(0),e(1),e(2),e(3),c(0), qk8(n+1), e(4),e(5),c(1),e(6),e(7), pv(n-1,1), c(2),e(8),e(9),c(3),e(10),e(11), pv(n,0), c(4),e(12),e(13),c(5),e(14),e(15),c(6),c(7)]
        elif mode == "aligned":
            o += [ e(0), "s_waitcnt lgkmcnt(0)", qk16(n+1), rd[0], e(1),e(2),c(0), e(3).replace("v_exp_f32","v_exp_f32_e64"), qk8(n+1), rd[1], e(4),e(5),c(1),e(6),e(7), pv(n-1,1), c(2),e(8),e(9),c(3),e(10),e(11), pv(n,0), c(4),e(12),e(13),c(5),e(14),e(15),c(6),c(7)]
        elif mode == "nods":
            o += [qk16(n+1), e(0),e(1),e(2),e(3),c(0), qk8(n+1), e(4),e(5),c(1),e(6),e(7), pv(n-1,1), c(2),e(8),e(9),c(3),e(10),e(11), pv(n,0), c(4),e(12),e(13),c(5),e(14),e(15),c(6),c(7)]
    return "\n".join("    "+x for x in o)
def run3(name, b, ini, iters, blk, nst):
    co = build(name, b, ini, 256, blk, 65536, iters, 256, 256)
    if not os.path.exists('/dev/kfd'): print(name); return
    k = AsmKernel(co, "mb_kernel"); out = DeviceBuffer(1 << 20); ka = pack_ptr_kernargs([out.ptr])
    res = []
    for it in range(6):
        hip_check(_hip.hipMemset(big._ptr, it, 256 << 20))
        k.launch((256,1,1),(blk,1,1),ka,65536)
        hip_check(_hip.hipDeviceSynchronize())
        o = out.to_numpy(np.uint32, (1 << 18,)).reshape(-1, 2)
        v = np.array([o[g*16+w] for g in range(256) for w in range(blk//64-4, blk//64)], dtype=np.float64)
        res.append((np.median(v[:,0]), np.median(v[:,1])))
    r = np.median(np.array(res), axis=0)
    print(f"{name:28s} cycles={r[0]:.0f} per-step={r[0]/iters/nst/(blk//256):.1f} time_us={r[1]/100:.2f} clock={r[0]/r[1]/10:.3f} GHz")

def variant(kind):
    b = body3(32, "nowait2")
    if kind == "accO":
        import re
        for O in AO:
            b = b.replace(f"v[{O}:{O+15}]", f"a[{O-128}:{O-128+15}]")
    if kind == "perm":
        import re
        b = re.sub(r"v_cvt_pk_bf16_f32 (v\d+), (v\d+), (v\d+)", r"v_perm_b32 \1, \3, \2, v117", b)
    if kind == "nods":
        b = "\n".join(l for l in b.split("\n") if "ds_read" not in l)
    if kind == "noexp":
        b = b.replace("v_exp_f32", "v_mov_b32")
    if kind == "exp2x":
        b = "\n".join((l + "\n" + l.replace("v_mov_b32", "v_mov_b32")) if False else l for l in b.split("\n"))
    return b
def run7(name, b, acc):
    ini = init("zero") + "\n    v_mov_b32 v117, 0x07060302\n" + "\n".join(f"    v_accvgpr_write_b32 a{i}, 0" for i in range(32))
    co = build(name, b, ini, 256, 256, 65536, 4, 256, 220)
    if not os.path.exists('/dev/kfd'): print(name); return
    k = AsmKernel(co, "mb_kernel"); out = DeviceBuffer(1 << 20); ka = pack_ptr_kernargs([out.ptr])
    res = []
    for it in range(10):
        hip_check(_hip.hipMemset(big._ptr, it, 256 << 20))
        k.launch((256,1,1),(256,1,1),ka,65536)
        hip_check(_hip.hipDeviceSynchronize())
        o = out.to_numpy(np.uint32, (1 << 18,)).reshape(-1, 2)
        v = np.array([o[g*16+w] for g in range(256) for w in range(4)], dtype=np.float64)
        res.append((np.median(v[:,0]), np.median(v[:,1])))
    r = np.median(np.array(res), axis=0)
    print(f"{name:20s} cycles={r[0]:.0f} time_us={r[1]/100:.2f} clock={r[0]/r[1]/10:.3f} GHz")
for rep in range(2):
    for kind in ("base", "accO", "perm", "nods", "noexp"):
        run7(kind, variant(kind), kind == "accO")
```
